```python
import torch

def _softmax(x, axis=-1):
    return torch.softmax(x, dim=axis)
def _gelu(x):
    return torch.nn.functional.gelu(x, approximate="tanh")
def _silu(x):
    return torch.nn.functional.silu(x)
def _sigmoid(x):
    return torch.sigmoid(x)
def _layernorm(x, axis=-1, eps=1e-5):
    m = x.mean(dim=axis, keepdim=True)
    v = x.var(dim=axis, keepdim=True, unbiased=False)
    return (x - m) / torch.sqrt(v + eps)
def _scatter_add(tgt, idx, src, axis=0):
    return tgt.clone().index_add_(axis, idx, src)
def _segment_sum(src, seg, n):
    out = torch.zeros((n,) + src.shape[1:], dtype=src.dtype)
    return out.index_add_(0, seg, src)
def _pad(x, pw):
    flat = tuple(v for pair in reversed(pw) for v in pair)
    return torch.nn.functional.pad(x, flat)

kernel_name = 'standalone__dense_activation_mish__prompt'

def setup_inputs():

    _w = (lambda a: (lambda t: t.to(torch.bfloat16) if t.is_floating_point() else t)(torch.as_tensor(a)))
    B, S, D, F = 1, 2048, 512, 1792
    return {
        "x": _w((lambda *s: torch.randn(*s, dtype=torch.bfloat16) * 0.05)(B, S, D)),
        "w1": _w((lambda *s: torch.randn(*s, dtype=torch.bfloat16) * 3.2)(D, F) * (D ** -0.5)),
        "b1": _w((lambda *s: torch.randn(*s, dtype=torch.bfloat16) * 0.05)(F)),
        "w2": _w((lambda *s: torch.randn(*s, dtype=torch.bfloat16) * 0.05)(F, D) * (F ** -0.5)),
    }

def reference(x, w1, b1, w2):
    h = torch.einsum("bsd,df->bsf", x, w1) + b1
    sp = torch.log1p(torch.exp(-torch.abs(h))) + torch.where(h > 0, h, torch.zeros_like(h))
    act = h * torch.tanh(sp)
    return torch.einsum("bsf,fd->bsd", act, w2)
```

```python
KNAME = "standalone__dense_activation_mish__prompt_kernel"

class Asm:
    def __init__(self):
        self.lines = []
        self.lab = 0
    def __call__(self, s):
        for l in s.split("\n"):
            self.lines.append("    " + l.strip() if not l.strip().endswith(":") else l.strip())
    def label(self, name):
        self.lines.append(name + ":")
    def newlabel(self, p="L"):
        self.lab += 1
        return f"{p}_{self.lab}"
    def text(self):
        return "\n".join(self.lines) + "\n"

HDR_COMMENT = """; Kernarg layout for this problem (56 bytes, ptrs only, base s[0:1]):
"""

def wrap(body, grid, block, lds, vgpr=256, accum=256, sgpr=102, name=KNAME, extra_comment=""):
    return (HDR_COMMENT + extra_comment +
        f"; @launch grid=({grid},1,1) block=({block},1,1) lds={lds}\n"
        '.amdgcn_target "amdgcn-amd-amdhsa--gfx950"\n.text\n'
        f".globl {name}\n.p2align 8\n.type {name},@function\n{name}:\n"
        + body + "    s_endpgm\n" + desc(name, vgpr, accum, sgpr))

def desc(name, vgpr, accum, sgpr):
    return ('.section .rodata,"a"\n.p2align 6\n'
        f".amdhsa_kernel {name}\n"
        f"  .amdhsa_next_free_vgpr {vgpr}\n  .amdhsa_next_free_sgpr {sgpr}\n  .amdhsa_accum_offset {accum}\n"
        "  .amdhsa_group_segment_fixed_size 0\n  .amdhsa_kernarg_size 56\n  .amdhsa_user_sgpr_count 2\n"
        "  .amdhsa_user_sgpr_kernarg_segment_ptr 1\n  .amdhsa_system_sgpr_workgroup_id_x 1\n"
        ".end_amdhsa_kernel\n")

def srd(a, d, base, nbytes):
    a(f"s_mov_b32 s{d}, s{base}")
    a(f"s_and_b32 s{d+1}, s{base+1}, 0xffff")
    a(f"s_mov_b32 s{d+2}, {nbytes}")
    a(f"s_mov_b32 s{d+3}, 0x20000")
```

```python
import sys
from asmlib import *

ACT_OFF = 0
CTL_OFF = 0x800000
K_LO, K_HI = 0x7F4A7C15, 0x9E3779B9

def gen(stamps=False, st_flags="sc1", ld_flags="sc1", xcdrot=True, xpf=True, fast=False, NRING=12):
    a = Asm()
    SX, SW1, SW2, SWS, SOUT, SB1 = 20, 24, 28, 32, 36, 40
    XCD, IDX, RBL, RB, CB, WV, W4 = 44, 45, 46, 47, 48, 49, 50
    TAG = 52
    T0, T1, T2, T3 = 54, 55, 56, 57
    CNT, REG, SL = 58, 59, 60
    CTL = 62
    STB = 64
    ns = [0]
    def stamp(rt=False):
        if not stamps: return
        op = "s_memrealtime" if rt else "s_memtime"
        a(f"{op} s[{STB+2*ns[0]}:{STB+2*ns[0]+1}]")
        ns[0] += 1
    stamp(True); stamp()
    a("s_load_dwordx8 s[4:11], s[0:1], 0")
    a("s_load_dwordx4 s[12:15], s[0:1], 32")
    a("s_load_dwordx2 s[16:17], s[0:1], 48")
    a("s_cmp_ge_u32 s2, 256")
    a("s_cbranch_scc1 L_end")
    a("v_lshrrev_b32 v1, 6, v0")
    a(f"s_and_b32 s{XCD}, s2, 7")
    a(f"s_lshr_b32 s{IDX}, s2, 3")
    a(f"v_readfirstlane_b32 s{WV}, v1")
    a("v_and_b32 v2, 63, v0")
    a(f"s_lshr_b32 s{RBL}, s{IDX}, 4")
    a(f"s_lshl_b32 s{RB}, s{XCD}, 1")
    a(f"s_add_u32 s{RB}, s{RB}, s{RBL}")
    a(f"s_and_b32 s{CB}, s{IDX}, 15")
    a(f"s_and_b32 s{W4}, s{WV}, 3")
    a(f"s_cmp_lt_u32 s{WV}, 4")
    a("s_cbranch_scc1 L_cwave")

    a("v_lshrrev_b32 v3, 3, v2")
    a("v_and_b32 v4, 7, v2")
    a("v_lshrrev_b32 v5, 1, v3")
    a("v_xor_b32 v6, v4, v5")
    a("v_xor_b32 v7, 4, v6")
    a("v_lshlrev_b32 v8, 10, v3")
    a(f"s_lshl_b32 s{T0}, s{RB}, 17")
    a(f"s_lshl_b32 s{T1}, s{W4}, 15")
    a(f"s_add_u32 s{T0}, s{T0}, s{T1}")
    a(f"v_add_u32 v9, s{T0}, v8")
    a("v_lshl_add_u32 v10, v6, 4, v9")
    a("v_lshl_add_u32 v11, v7, 4, v9")
    a(f"v_add_u32 v12, {2*7168}, v10")
    a(f"v_add_u32 v13, {3*7168}, v11")
    a(f"v_add_u32 v11, {7168}, v11")
    a("v_and_b32 v5, 1, v5")
    a("v_lshlrev_b32 v5, 2, v5")
    a("v_xor_b32 v5, v4, v5")
    a(f"s_lshl_b32 s{T0}, s{RBL}, 1")
    a(f"s_add_u32 s{T0}, s{T0}, s{CB}")
    a(f"s_and_b32 s{T3}, s{T0}, 7")
    a(f"s_lshl_b32 s{T0}, s{T3}, 7")
    a(f"s_mul_i32 s{T1}, s{W4}, {448*1024}")
    a(f"s_add_u32 s{T0}, s{T0}, s{T1}")
    a(f"v_add_u32 v9, s{T0}, v8")
    a("v_lshl_add_u32 v18, v5, 4, v9")
    a(f"v_add_u32 v19, {7168}, v18")
    a(f"v_add_u32 v20, {2*7168}, v18")
    a(f"v_add_u32 v21, {3*7168}, v18")
    a("v_lshrrev_b32 v3, 4, v2")
    a("v_and_b32 v4, 15, v2")
    a("v_lshlrev_b32 v5, 2, v3")
    a("v_xor_b32 v4, v4, v5")
    a("v_mul_u32_u24 v3, 3584, v3")
    a(f"s_mul_i32 s{T0}, s{W4}, {16*3584}")
    a(f"s_lshl_b32 s{T1}, s{CB}, 8")
    a(f"s_add_u32 s{T0}, s{T0}, s{T1}")
    a(f"v_add_u32 v3, s{T0}, v3")
    a("v_lshl_add_u32 v14, v4, 4, v3")
    for j in (1, 2, 3): a(f"v_add_u32 v{14+j}, {j*(4*3584-1024)}, v14")
    a(f"s_mov_b32 s{SL}, s{XCD}" if xcdrot else f"s_mov_b32 s{SL}, 0")
    a(f"s_lshl_b32 s{REG}, s{W4}, 12")
    a("s_waitcnt lgkmcnt(0)")
    stamp()
    srd(a, SX, 4, 2048*512*2)
    srd(a, SW1, 6, 512*1792*2)
    a(f"s_cmp_ge_u32 s{CB}, 14")
    a("s_cbranch_scc1 L_lidle")
    def issue_slice():
        a(f"s_lshl_b32 s{T0}, s{SL}, 7")
        a(f"s_mov_b32 m0, s{REG}")
        a(f"s_mul_i32 s{T1}, s{SL}, {64*3584}")
        for j in range(4): a(f"buffer_load_dwordx4 v{10+j}, s[{SX}:{SX+3}], s{T0} offen offset:{j*1024} lds")
        a(f"s_add_u32 m0, s{REG}, 16384")
        a(f"s_add_u32 s{SL}, s{SL}, 1")
        for j in range(4): a(f"buffer_load_dwordx4 v{14+j}, s[{SW1}:{SW1+3}], s{T1} offen offset:{j*1024} lds")
        a(f"s_and_b32 s{SL}, s{SL}, 7")
        a(f"s_add_u32 s{REG}, s{REG}, 32768")
        a(f"s_cmp_ge_u32 s{REG}, {5*32768}")
        a(f"s_cselect_b32 s{T0}, {5*32768}, 0")
        a(f"s_sub_u32 s{REG}, s{REG}, s{T0}")
    def common_l_setup():
        srd(a, SW2, 10, 1792*512*2)
        srd(a, SWS, 16, 0x1000000)
        srd(a, SOUT, 12, 2048*512*2)
        a(f"s_lshl_b32 s{T0}, s{RB}, 10")
        a(f"s_add_u32 s{T0}, s{T0}, {CTL_OFF}")
        a(f"s_add_u32 s{CTL}, s16, s{T0}")
        a(f"s_addc_u32 s{CTL+1}, s17, 0")
        a(f"s_load_dwordx2 s[{TAG}:{TAG+1}], s[{CTL}:{CTL+1}], 0")
    issue_slice()
    common_l_setup()
    a(f"s_mov_b32 s{CNT}, 0")
    a.label("L_lloop")
    issue_slice()
    a("s_waitcnt vmcnt(8) lgkmcnt(0)")
    a("s_barrier")
    a(f"s_add_u32 s{CNT}, s{CNT}, 1")
    a(f"s_cmp_lt_u32 s{CNT}, 7")
    a("s_cbranch_scc1 L_lloop")
    stamp()
    def issue_unit(u, region):
        for h in range(2):
            a(f"s_add_u32 m0, s{REG}, {region*32768 + h*4096}")
            a(f"s_mov_b32 s{T0}, {(u*64 + h*32)*1024}")
            for j in range(4): a(f"buffer_load_dwordx4 v{18+j}, s[{SW2}:{SW2+3}], s{T0} offen offset:{j*1024} lds")
    a(f"s_lshl_b32 s{REG}, s{W4}, 13")
    issue_unit(0, 3)
    a("s_waitcnt vmcnt(8)")
    a("s_barrier")
    stamp()
    issue_unit(1, 4)
    a("s_barrier")
    a("s_branch L_lw2")
    a.label("L_lidle")
    common_l_setup()
    a(f"s_lshl_b32 s{REG}, s{W4}, 13")
    issue_unit(0, 3)
    a("s_waitcnt lgkmcnt(0)")
    a("s_barrier")
    issue_unit(1, 4)
    a.label("L_lw2")
    a("v_lshrrev_b32 v3, 5, v2")
    a("v_bfe_u32 v4, v2, 2, 2")
    a("v_lshl_add_u32 v3, v3, 2, v4")
    a("v_lshlrev_b32 v3, 7, v3")
    a("v_bfe_u32 v4, v2, 3, 1")
    a("v_lshl_add_u32 v3, v4, 6, v3")
    a("v_bfe_u32 v4, v2, 4, 1")
    a("v_lshl_add_u32 v3, v4, 5, v3")
    a("v_and_b32 v4, 3, v2")
    a("v_lshl_add_u32 v3, v4, 3, v3")
    a(f"v_add_u32 v22, s{REG}, v3")
    a("v_xor_b32 v23, 64, v22")
    a("v_add_u32 v24, 0x10000, v22"); a("v_add_u32 v25, 0x10000, v23")
    a("v_add_u32 v26, 0x20000, v22"); a("v_add_u32 v27, 0x20000, v23")
    W2R = 32
    ACC = 96
    WB = 160
    AR = 192
    def w2read(region, k, dst):
        off = region*32768 + k*2048
        base = off >> 16; off &= 0xffff
        for nt in range(2):
            va = 22 + 2*base + nt
            a(f"ds_read_b64_tr_b16 v[{dst+4*nt}:{dst+4*nt+1}], v{va} offset:{off}")
            a(f"ds_read_b64_tr_b16 v[{dst+4*nt+2}:{dst+4*nt+3}], v{va} offset:{off+1024}")
    issue_unit(2, 0)
    a("s_waitcnt vmcnt(16)")
    for k in range(4): w2read(3, k, W2R + 8*k)
    issue_unit(3, 1)
    a("s_waitcnt vmcnt(16)")
    for k in range(4): w2read(4, k, W2R + 32 + 8*k)
    issue_unit(4, 2)
    a("s_waitcnt lgkmcnt(0)")
    issue_unit(5, 3)
    issue_unit(6, 4)
    stamp()
    for i in range(64): a(f"v_mov_b32 v{ACC+i}, 0")
    a(f"s_add_u32 s{TAG}, s{TAG}, {K_LO}")
    a(f"s_addc_u32 s{TAG+1}, s{TAG+1}, {K_HI}")
    a(f"s_lshr_b32 s{T0}, s{CB}, 3")
    a(f"s_lshl_b32 s{T1}, s{T0}, 8")
    a(f"s_mul_i32 s{T2}, s{W4}, 56")
    a(f"s_add_u32 s{T1}, s{T1}, s{T2}")
    a(f"s_add_u32 s{T1}, s{T1}, 256")
    a("v_min_u32 v3, 6, v2")
    a(f"v_lshl_add_u32 v28, v3, 3, s{T1}")
    a(f"s_lshl_b32 s{T1}, s{RB}, 1")
    a(f"s_add_u32 s{T1}, s{T1}, s{T0}")
    a(f"s_mul_i32 s{T1}, s{T1}, {112*2048}")
    a(f"s_mul_i32 s{T2}, s{W4}, {28*2048}")
    a(f"s_add_u32 s{T1}, s{T1}, s{T2}")
    a(f"v_lshl_add_u32 v29, v2, 4, s{T1}")
    a(f"s_mov_b32 s{CNT}, 0")
    a.label("L_poll")
    a(f"global_load_dwordx2 v[30:31], v28, s[{CTL}:{CTL+1}] sc1")
    a(f"s_add_u32 s{CNT}, s{CNT}, 1")
    a("s_waitcnt vmcnt(0)")
    a(f"v_cmp_ne_u64 vcc, s[{TAG}:{TAG+1}], v[30:31]")
    a(f"s_cmp_ge_u32 s{CNT}, 0x100000")
    a("s_cbranch_scc1 L_pollx")
    a("s_cbranch_vccnz L_poll")
    a.label("L_pollx")
    stamp()
    RK = NRING // 2
    def actload(k):
        slot = k % 8
        for mt in range(2):
            off = k*2048 + mt*1024
            so, io = off & ~4095, off & 4095
            if io == 0 or (mt == 0 and k == 0): a(f"s_mov_b32 s{T0}, {so}")
            a(f"buffer_load_dwordx4 v[{AR+8*slot+4*mt}:{AR+8*slot+4*mt+3}], v29, s[{SWS}:{SWS+3}], s{T0} offen offset:{io} {ld_flags}")
    regs_of_unit = {2: 0, 3: 1, 4: 2, 5: 3, 6: 4}
    def wsrc(k):
        return W2R + 8*k if k < 8 else WB + 8*(k % 4)
    def wread(k):
        if 8 <= k < 28: w2read(regs_of_unit[k // 4], k % 4, WB + 8*(k % 4))
    for k in range(RK): actload(k)
    for k in range(28):
        nload_after = min(28, k + RK) - (k + 1)
        lg = ""
        if k >= 8:
            pend = sum(1 for kk in (k+1,) if 8 <= kk < 28) * 4
            lg = f" lgkmcnt({pend})"
        a(f"s_waitcnt vmcnt({2*nload_after}){lg}")
        slot = k % 8
        w = wsrc(k)
        i = 0
        for nt in range(2):
            for mt in range(2):
                t = ACC + 16*(2*nt + mt)
                a(f"v_mfma_f32_32x32x16_bf16 v[{t}:{t+15}], v[{w+4*nt}:{w+4*nt+3}], v[{AR+8*slot+4*mt}:{AR+8*slot+4*mt+3}], v[{t}:{t+15}]")
                if i == 0: wread(k + 2)
                if i == 1 and k + RK < 28: actload(k + RK)
                i += 1
    stamp()
    a("s_barrier")
    a("v_lshlrev_b32 v3, 4, v2")
    a(f"s_lshl_b32 s{T0}, s{W4}, 12")
    a(f"v_add_u32 v4, s{T0}, v3")
    a("s_nop 7")
    for t in range(4):
        for g in range(4):
            a(f"ds_write_b128 v4, v[{ACC+16*t+4*g}:{ACC+16*t+4*g+3}] offset:{t*16384 + g*1024}")
    a(f"s_lshl_b32 s{T0}, s{W4}, 14")
    a(f"v_add_u32 v4, s{T0}, v3")
    a("s_waitcnt lgkmcnt(0)")
    a("s_barrier")
    for s in range(4):
        for g in range(4):
            a(f"ds_read_b128 v[{32+16*s+4*g}:{32+16*s+4*g+3}], v4 offset:{s*4096 + g*1024}")
    a(f"s_lshr_b32 s{T0}, s{CB}, 3")
    a(f"s_lshl_b32 s{T0}, s{T0}, 6")
    a(f"s_lshl_b32 s{T1}, s{RB}, 7")
    a(f"s_add_u32 s{T0}, s{T0}, s{T1}")
    a(f"s_and_b32 s{T1}, s{W4}, 1")
    a(f"s_lshl_b32 s{T1}, s{T1}, 5")
    a(f"s_add_u32 s{T0}, s{T0}, s{T1}")
    a(f"s_lshl_b32 s{T0}, s{T0}, 10")
    a(f"s_lshl_b32 s{T1}, s{T3}, 7")
    a(f"s_add_u32 s{T0}, s{T0}, s{T1}")
    a(f"s_lshr_b32 s{T1}, s{W4}, 1")
    a(f"s_lshl_b32 s{T1}, s{T1}, 6")
    a(f"s_add_u32 s{T0}, s{T0}, s{T1}")
    a("v_and_b32 v5, 31, v2")
    a("v_lshlrev_b32 v5, 10, v5")
    a("v_lshrrev_b32 v6, 5, v2")
    a("v_lshl_add_u32 v5, v6, 4, v5")
    a("s_waitcnt lgkmcnt(8)")
    for i in range(0, 16, 2): a(f"v_pk_add_f32 v[{32+i}:{33+i}], v[{32+i}:{33+i}], v[{48+i}:{49+i}]")
    a("s_waitcnt lgkmcnt(0)")
    for i in range(0, 16, 2): a(f"v_pk_add_f32 v[{64+i}:{65+i}], v[{64+i}:{65+i}], v[{80+i}:{81+i}]")
    for i in range(0, 16, 2): a(f"v_pk_add_f32 v[{32+i}:{33+i}], v[{32+i}:{33+i}], v[{64+i}:{65+i}]")
    for i in range(8): a(f"v_cvt_pk_bf16_f32 v{96+i}, v{32+2*i}, v{33+2*i}")
    a("s_nop 1")
    a("v_permlane32_swap_b32 v96, v98"); a("v_permlane32_swap_b32 v97, v99")
    a("v_permlane32_swap_b32 v100, v102"); a("v_permlane32_swap_b32 v101, v103")
    a(f"buffer_store_dwordx4 v[96:99], v5, s[{SOUT}:{SOUT+3}], s{T0} offen")
    a(f"buffer_store_dwordx4 v[100:103], v5, s[{SOUT}:{SOUT+3}], s{T0} offen offset:32")
    if stamps:
        a("s_waitcnt vmcnt(0)")
    stamp()
    nsl = ns[0]
    a("s_branch L_fin")

    a.label("L_cwave")
    ns[0] = 2
    FH, MH = T2, T3
    a(f"s_and_b32 s{FH}, s{W4}, 1")
    a(f"s_lshr_b32 s{MH}, s{W4}, 1")
    a("v_lshrrev_b32 v3, 5, v2")
    a("v_bfe_u32 v4, v2, 2, 2")
    a("v_lshl_add_u32 v5, v3, 3, v4")
    a("v_lshlrev_b32 v5, 8, v5")
    a(f"s_lshl_b32 s{T0}, s{FH}, 1")
    a(f"v_xor_b32 v4, s{T0}, v4")
    a("v_lshl_add_u32 v5, v4, 6, v5")
    a("v_bfe_u32 v4, v2, 4, 1")
    a("v_lshl_add_u32 v5, v4, 5, v5")
    a("v_and_b32 v4, 3, v2")
    a("v_lshl_add_u32 v5, v4, 3, v5")
    a("v_add_u32 v10, 16384, v5")
    a("v_xor_b32 v11, 64, v10")
    a("v_and_b32 v4, 31, v2")
    a("v_bfe_u32 v5, v2, 1, 3")
    a("v_xor_b32 v5, v5, v3")
    a("v_lshlrev_b32 v4, 7, v4")
    a("v_lshl_add_u32 v4, v5, 4, v4")
    a(f"s_lshl_b32 s{T0}, s{MH}, 13")
    a(f"v_add_u32 v12, s{T0}, v4")
    for k in (1, 2, 3): a(f"v_xor_b32 v{12+k}, {k*32}, v12")
    a(f"s_lshl_b32 s{T0}, s{CB}, 8")
    a(f"s_lshl_b32 s{T1}, s{FH}, 7")
    a(f"s_add_u32 s{T0}, s{T0}, s{T1}")
    a(f"v_lshl_add_u32 v16, v3, 3, s{T0}")
    a("v_lshlrev_b32 v17, 7, v2")
    a("s_waitcnt lgkmcnt(0)")
    stamp()
    a(f"s_lshl_b32 s{T0}, s{RB}, 10")
    a(f"s_add_u32 s{T0}, s{T0}, {CTL_OFF}")
    a(f"s_add_u32 s{CTL}, s16, s{T0}")
    a(f"s_addc_u32 s{CTL+1}, s17, 0")
    a(f"s_load_dwordx2 s[{TAG}:{TAG+1}], s[{CTL}:{CTL+1}], 0")
    if xpf:
        srd(a, SX, 4, 2048*512*2)
        a(f"s_cmp_lg_u32 s{W4}, 0")
        a("s_cbranch_scc1 L_nopf")
        a(f"s_lshl_b32 s{T0}, s{XCD}, 18"); a(f"s_lshl_b32 s{T1}, s{IDX}, 13"); a(f"s_add_u32 s{T0}, s{T0}, s{T1}")
        a(f"buffer_load_dword v18, v17, s[{SX}:{SX+3}], s{T0} offen")
        a.label("L_nopf")
    srd(a, SB1, 8, 1792*2)
    srd(a, SWS, 16, 0x1000000)
    a(f"s_getreg_b32 s{SL}, hwreg(HW_REG_XCC_ID)")
    a(f"s_cmp_ge_u32 s{CB}, 14")
    a("s_cbranch_scc1 L_cidle")
    CACC = 64; FB = 128; TMP = 192
    for ft in range(2):
        for g in range(4):
            r = TMP + 8*ft + 2*g
            a(f"buffer_load_dwordx2 v[{r}:{r+1}], v16, s[{SB1}:{SB1+3}], 0 offen offset:{ft*64 + g*16}")
    a("s_waitcnt vmcnt(0)")
    for ft in range(2):
        for g in range(4):
            r = TMP + 8*ft + 2*g
            for mt in range(2):
                d = CACC + 16*(2*ft + mt) + 4*g
                a(f"v_lshlrev_b32 v{d}, 16, v{r}")
                a(f"v_and_b32 v{d+1}, 0xffff0000, v{r}")
                a(f"v_lshlrev_b32 v{d+2}, 16, v{r+1}")
                a(f"v_and_b32 v{d+3}, 0xffff0000, v{r+1}")
    def reads(k):
        b = FB + 16*k
        out = []
        for ft in range(2):
            out.append(f"ds_read_b64_tr_b16 v[{b+4*ft}:{b+4*ft+1}], v{10+ft} offset:{k*4096}")
            out.append(f"ds_read_b64_tr_b16 v[{b+4*ft+2}:{b+4*ft+3}], v{10+ft} offset:{k*4096+1024}")
        for mt in range(2):
            out.append(f"ds_read_b128 v[{b+8+4*mt}:{b+8+4*mt+3}], v{12+k} offset:{mt*4096}")
        return out
    def mfmas(k):
        b = FB + 16*k
        out = []
        for ft in range(2):
            for mt in range(2):
                t = CACC + 16*(2*ft + mt)
                out.append(f"v_mfma_f32_32x32x16_bf16 v[{t}:{t+15}], v[{b+4*ft}:{b+4*ft+3}], v[{b+8+4*mt}:{b+8+4*mt+3}], v[{t}:{t+15}]")
        return out
    def inter(ms, rs):
        n = len(ms)
        per = (len(rs) + n - 1) // n if rs else 0
        for i, m in enumerate(ms):
            a(m)
            for r in rs[i*per:(i+1)*per]: a(r)
    a(f"s_mov_b32 s{CNT}, 0")
    a(f"s_mov_b32 s{REG}, 0")
    a("s_mov_b32 s61, 32768")
    a("s_waitcnt lgkmcnt(0)")
    a("s_barrier")
    stamp()
    a(f"s_add_u32 s{TAG}, s{TAG}, {K_LO}")
    a(f"s_addc_u32 s{TAG+1}, s{TAG+1}, {K_HI}")
    def publish_alive(lbl):
        a(f"s_cmp_lg_u32 s{W4}, 0")
        a(f"s_cbranch_scc1 {lbl}")
        a(f"s_and_b32 s{T0}, s{SL}, 15")
        a(f"s_add_u32 s{T0}, s{T0}, 1")
        a(f"s_xor_b32 s{T0}, s{T0}, s{TAG}")
        a(f"v_mov_b32 v20, s{T0}")
        a(f"v_mov_b32 v21, s{TAG+1}")
        a(f"s_lshl_b32 s{T0}, s{CB}, 3")
        a(f"v_mov_b32 v19, s{T0}")
        a(f"s_mov_b64 exec, 1")
        a(f"global_store_dwordx2 v19, v[20:21], s[{CTL}:{CTL+1}] offset:128 sc1")
        a(f"s_mov_b64 exec, -1")
        a.label(lbl)
    publish_alive("L_noalive")
    for r in reads(0) + reads(1): a(r)
    a("s_branch L_centry")
    a.label("L_cloop")
    a("s_barrier")
    for r in reads(0): a(r)
    inter(mfmas(3), reads(1))
    a.label("L_centry")
    a("s_waitcnt lgkmcnt(6)")
    inter(mfmas(0), reads(2))
    a("s_waitcnt lgkmcnt(6)")
    inter(mfmas(1), reads(3))
    a(f"s_add_u32 s{REG}, s{REG}, 1")
    a(f"s_cmp_eq_u32 s{REG}, 5")
    a(f"s_cselect_b32 s{T0}, {(-4*32768) & 0xffffffff}, s61")
    a(f"s_cselect_b32 s{REG}, 0, s{REG}")
    a("s_waitcnt lgkmcnt(6)")
    ms = mfmas(2)
    a(ms[0]); a(f"v_add_u32 v10, s{T0}, v10"); a(f"v_add_u32 v11, s{T0}, v11")
    a(ms[1]); a(f"v_add_u32 v12, s{T0}, v12"); a(f"v_add_u32 v13, s{T0}, v13")
    a(ms[2]); a(f"v_add_u32 v14, s{T0}, v14"); a(f"v_add_u32 v15, s{T0}, v15")
    a(ms[3])
    a(f"s_add_u32 s{CNT}, s{CNT}, 1")
    a(f"s_cmp_lt_u32 s{CNT}, 8")
    a("s_waitcnt lgkmcnt(0)")
    a("s_cbranch_scc1 L_cloop")
    a("s_barrier")
    for m in mfmas(3): a(m)
    stamp()
    a(f"s_lshl_b32 s{T0}, s{RB}, 1")
    a(f"s_add_u32 s{T0}, s{T0}, s{MH}")
    a(f"s_mul_i32 s{T0}, s{T0}, 112")
    a(f"s_lshl_b32 s{T1}, s{CB}, 3")
    a(f"s_add_u32 s{T0}, s{T0}, s{T1}")
    a(f"s_lshl_b32 s{T1}, s{FH}, 2")
    a(f"s_add_u32 s{T0}, s{T0}, s{T1}")
    a(f"s_lshl_b32 s{T0}, s{T0}, 11")
    a(f"v_lshl_add_u32 v16, v2, 4, s{T0}")
    a("v_add_u32 v17, 4096, v16")
    KS = 13
    import struct
    f2u = lambda f: struct.unpack("<I", struct.pack("<f", f))[0]
    a(f"s_mov_b32 s4, {f2u(1.4426950408889634)}"); a("s_mov_b32 s5, s4")
    a(f"v_mov_b32 v4, {f2u(-float(KS))}"); a("v_mov_b32 v5, v4")
    a(f"s_mov_b32 s6, {f2u(2.0**(1-KS))}"); a("s_mov_b32 s7, s6")
    a(f"s_mov_b32 s8, {f2u(2.0**(1-2*KS))}"); a("s_mov_b32 s9, s8")
    p = lambda r: f"v[{r}:{r+1}]"
    for t in range(4):
        ft, mt = t >> 1, t & 1
        x = CACC + 16*t
        G, S, D = TMP, TMP + 16, TMP + 32
        O = FB + 8*t
        for i in range(0, 16, 2): a(f"v_pk_fma_f32 {p(G+i)}, {p(x+i)}, s[4:5], v[4:5]")
        for i in range(16): a(f"v_exp_f32 v{G+i}, v{G+i} clamp")
        for i in range(0, 16, 2): a(f"v_pk_add_f32 {p(S+i)}, {p(G+i)}, s[6:7]")
        for i in range(0, 16, 2): a(f"v_pk_fma_f32 {p(D+i)}, {p(G+i)}, {p(S+i)}, s[8:9]")
        for i in range(16): a(f"v_rcp_f32 v{D+i}, v{D+i}")
        for i in range(0, 16, 2): a(f"v_pk_mul_f32 {p(D+i)}, {p(D+i)}, {p(G+i)}")
        for i in range(0, 16, 2): a(f"v_pk_mul_f32 {p(D+i)}, {p(D+i)}, {p(S+i)}")
        for i in range(0, 16, 2): a(f"v_pk_mul_f32 {p(G+i)}, {p(D+i)}, {p(x+i)}")
        for i in range(8): a(f"v_cvt_pk_bf16_f32 v{O+i}, v{G+2*i}, v{G+2*i+1}")
        for h in range(2):
            a(f"buffer_store_dwordx4 v[{O+4*h}:{O+4*h+3}], v{16+ft}, s[{SWS}:{SWS+3}], 0 offen offset:{h*2048 + mt*1024} {st_flags}")
    stamp()
    a(f"s_lshl_b32 s{T0}, s{CB}, 4")
    a(f"s_lshl_b32 s{T1}, s{FH}, 3")
    a(f"s_add_u32 s{T0}, s{T0}, s{T1}")
    a(f"s_lshl_b32 s{T1}, s{MH}, 8")
    a(f"s_add_u32 s{T0}, s{T0}, s{T1}")
    a(f"v_mov_b32 v19, s{T0}")
    a(f"v_mov_b32 v20, s{TAG}")
    a(f"v_mov_b32 v21, s{TAG+1}")
    a("s_mov_b64 exec, 1")
    a("s_waitcnt vmcnt(0)")
    stamp()
    a(f"global_store_dwordx2 v19, v[20:21], s[{CTL}:{CTL+1}] offset:256 {st_flags}")
    a(f"s_or_b32 s{T0}, s{CB}, s{W4}")
    a(f"s_cmp_lg_u32 s{T0}, 0")
    a("s_cbranch_scc1 L_cdone")
    a("s_mov_b64 exec, 0xffff")
    a("v_lshlrev_b32 v19, 3, v2")
    a(f"s_mov_b32 s{CNT}, 0")
    a.label("L_poll2")
    a(f"global_load_dwordx2 v[22:23], v19, s[{CTL}:{CTL+1}] offset:128 sc1")
    a(f"s_add_u32 s{CNT}, s{CNT}, 1")
    a("s_waitcnt vmcnt(0)")
    a(f"v_xor_b32 v22, s{TAG}, v22")
    a(f"v_xor_b32 v23, s{TAG+1}, v23")
    a("v_lshrrev_b32 v22, 5, v22")
    a("v_or_b32 v22, v22, v23")
    a("v_cmp_ne_u32 vcc, 0, v22")
    a(f"s_cmp_ge_u32 s{CNT}, 0x100000")
    a("s_cbranch_scc1 L_poll2x")
    a("s_cbranch_vccnz L_poll2")
    a.label("L_poll2x")
    a("s_mov_b64 exec, 1")
    a("v_mov_b32 v19, 0")
    a(f"global_store_dwordx2 v19, v[20:21], s[{CTL}:{CTL+1}] sc1")
    a("s_branch L_cdone")
    a.label("L_cidle")
    a("s_waitcnt lgkmcnt(0)")
    a("s_barrier")
    a(f"s_add_u32 s{TAG}, s{TAG}, {K_LO}")
    a(f"s_addc_u32 s{TAG+1}, s{TAG+1}, {K_HI}")
    publish_alive("L_cdone")
    if stamps:
        a("s_waitcnt vmcnt(0)")
        stamp()
    a.label("L_fin")
    if stamps:
        NS = max(ns[0], nsl) + 1
        a(f"s_memrealtime s[{STB+2*(NS-1)}:{STB+2*(NS-1)+1}]")
        assert STB + 2*NS <= 102
        a("s_waitcnt lgkmcnt(0)")
        a(f"s_lshl_b32 s{T0}, s2, 3"); a(f"s_add_u32 s{T0}, s{T0}, s{WV}"); a(f"s_mul_i32 s{T0}, s{T0}, {NS*8}")
        a(f"s_add_u32 s{T0}, s{T0}, 0x900000")
        a("v_mov_b32 v5, 0"); a("s_mov_b64 exec, 1")
        for i in range(NS):
            a(f"v_mov_b32 v6, s{STB+2*i}"); a(f"v_mov_b32 v7, s{STB+2*i+1}")
            a(f"buffer_store_dwordx2 v[6:7], v5, s[{SWS}:{SWS+3}], s{T0} offen offset:{i*8}"); a("s_nop 1")
        print("stamps:", NS, file=sys.stderr)
    a.label("L_end")
    return wrap(a.text(), 256, 512, 160*1024)

if __name__ == "__main__":
    open("../cdna_kernels/standalone__dense_activation_mish__prompt.s", "w").write(gen())
    open("../bench/k1s.s", "w").write(gen(stamps=True))
    open("../bench/k1p.s", "w").write(gen(stamps=True, st_flags=""))
```
